```python
import torch

def _softmax(x, axis=-1):
    return torch.softmax(x, dim=axis)
def _gelu(x):
    return torch.nn.functional.gelu(x, approximate="tanh")
def _silu(x):
    return torch.nn.functional.silu(x)
def _sigmoid(x):
    return torch.sigmoid(x)
def _layernorm(x, axis=-1, eps=1e-5):
    m = x.mean(dim=axis, keepdim=True)
    v = x.var(dim=axis, keepdim=True, unbiased=False)
    return (x - m) / torch.sqrt(v + eps)
def _scatter_add(tgt, idx, src, axis=0):
    return tgt.clone().index_add_(axis, idx, src)
def _segment_sum(src, seg, n):
    out = torch.zeros((n,) + src.shape[1:], dtype=src.dtype)
    return out.index_add_(0, seg, src)
def _pad(x, pw):
    flat = tuple(v for pair in reversed(pw) for v in pair)
    return torch.nn.functional.pad(x, flat)

kernel_name = 'recurrent_scan__mha_block_cached__glu_gated_swiglu__prompt'

def setup_inputs():

    _w = (lambda a: (lambda t: t.to(torch.bfloat16) if t.is_floating_point() else t)(torch.as_tensor(a)))
    def _A_setup():
        B, Sq, D = 1, 2048, 640
        H, Sk, Dh = 32, 2048, 192
        return {
            "x": _w((lambda *s: torch.randn(*s, dtype=torch.bfloat16) * 0.05)(B, Sq, D)),
            "k_cache": _w((lambda *s: torch.randn(*s, dtype=torch.bfloat16) * 1.6)(B, H, Sk, Dh)),
            "v_cache": _w((lambda *s: torch.randn(*s, dtype=torch.bfloat16) * 1.6)(B, H, Sk, Dh)),
            "wq": _w((lambda *s: torch.randn(*s, dtype=torch.bfloat16) * 1.6)(D, H * Dh) * (D ** -0.5)),
            "wo": _w((lambda *s: torch.randn(*s, dtype=torch.bfloat16) * 1.6)(H * Dh, D) * ((H * Dh) ** -0.5)),
        }
    _A_in = _A_setup()

    def _B_setup():
        B, S, D, F = 1, 2048, 640, 1536
        return {
            "x": _w((lambda *s: torch.randn(*s, dtype=torch.bfloat16) * 0.05)(B, S, D)),
            "w1": _w((lambda *s: torch.randn(*s, dtype=torch.bfloat16) * 0.2)(D, F) * (2.0 / D) ** 0.5),
            "w3": _w((lambda *s: torch.randn(*s, dtype=torch.bfloat16) * 0.2)(D, F) * (2.0 / D) ** 0.5),
            "w2": _w((lambda *s: torch.randn(*s, dtype=torch.bfloat16) * 0.2)(F, D) * (2.0 / F) ** 0.5),
        }
    _B_in = _B_setup()

    return {
        "A_x": _A_in["x"],
        "A_k_cache": _A_in["k_cache"],
        "A_v_cache": _A_in["v_cache"],
        "A_wq": _A_in["wq"],
        "A_wo": _A_in["wo"],
        "B_x": _B_in["x"],
        "B_w1": _B_in["w1"],
        "B_w3": _B_in["w3"],
        "B_w2": _B_in["w2"],
    }

def reference(A_x, A_k_cache, A_v_cache, A_wq, A_wo, B_x, B_w1, B_w3, B_w2):
    def _A_ref(x, k_cache, v_cache, wq, wo):
        B, Sq, D = x.shape
        H, Dh = 32, 192
        q = (lambda x, *d: x.permute(*d))((x @ wq).reshape(B, Sq, H, Dh), 0, 2, 1, 3)
        scores = torch.einsum("bhqd,bhkd->bhqk", q, k_cache) * (Dh ** -0.5)
        p = _softmax(scores, axis=-1)
        o = torch.einsum("bhqk,bhkd->bhqd", p, v_cache)
        return (lambda x, *d: x.permute(*d))(o, 0, 2, 1, 3).reshape(B, Sq, H * Dh) @ wo

    def _B_ref(x, w1, w3, w2):
        gate = torch.einsum("bsd,df->bsf", x, w1)
        up = torch.einsum("bsd,df->bsf", x, w3)
        h = _silu(gate) * up
        out = torch.einsum("bsf,fd->bsd", h, w2)
        return out

    x = A_x
    xn = _layernorm(x, axis=-1)
    s = _A_ref(xn, A_k_cache, A_v_cache, A_wq, A_wo)
    g = _silu(_B_ref(xn, B_w1, B_w3, B_w2))
    return x + s * g
```

```python
import sys, importlib
import chk
HDR = open('recurrent_scan__mha_block_cached__glu_gated_swiglu__prompt.s.ref').read().split('; Override launch')[0]
def build(mods, out, **kw):
    launches, code, descs = [], [], []
    nerr = 0
    for m in mods:
        M = importlib.import_module(m)
        lines, desc, dyns = M.build(**kw.get(m, {}))
        for d in dyns:
            errs = chk.check(d, m)
            for e in errs[:40]: print(e)
            nerr += len(errs)
        launches.append(M.LAUNCH); code += lines; descs.append(desc)
    s = HDR + "\n".join(launches) + '\n.amdgcn_target "amdgcn-amd-amdhsa--gfx950"\n.text\n' + "\n".join(code) + '\n.section .rodata,"a"\n' + "\n".join(".p2align 6\n" + d for d in descs) + "\n"
    open(out, 'w').write(s)
    print(f"wrote {out}: {len(code)} lines, hazard errors: {nerr}")
    return nerr
if __name__ == '__main__':
    build(sys.argv[2].split(','), sys.argv[1])
```

```python
import re
def regs_of(tok):
    tok = tok.strip()
    tok = re.sub(r'^-|^\|', '', tok); tok = tok.replace('abs(', '').rstrip(')|')
    m = re.fullmatch(r'([vas])\[(\d+):(\d+)\]', tok)
    if m: return [(m.group(1), i) for i in range(int(m.group(2)), int(m.group(3)) + 1)]
    m = re.fullmatch(r'([vas])(\d+)', tok)
    if m: return [(m.group(1), int(m.group(2)))]
    if tok == 'vcc': return [('s', 'vcc')]
    if tok == 'exec': return [('s', 'exec')]
    if tok == 'm0': return [('s', 'm0')]
    return []
TRANS = ('v_exp_f32', 'v_log_f32', 'v_rcp_f32', 'v_rsq_f32', 'v_sqrt_f32')
class I:
    def __init__(s, text):
        s.text = text
        t = text.split(';')[0].strip()
        p = t.split(None, 1)
        s.op = p[0]
        rest = p[1] if len(p) > 1 else ''
        ops = [x.strip() for x in re.split(r',(?![^\[]*\])', rest)] if rest else []
        s.mods = ''
        if ops:
            q = ops[-1].split(None, 1)
            ops[-1] = q[0]
            s.mods = q[1] if len(q) > 1 else ''
        s.ops = ops
        op = s.op
        s.kind = ('mfma' if op.startswith('v_mfma') else 'valu' if op.startswith('v_') else
                  'ds' if op.startswith('ds_') else 'vmem' if op.startswith(('buffer_', 'global_')) else
                  'smem' if op.startswith(('s_load', 's_memtime', 's_memrealtime', 's_buffer_load')) else 'salu')
        R = lambda i: regs_of(ops[i]) if i < len(ops) else []
        s.w, s.r = [], []
        s.lds_dma = s.kind == 'vmem' and ('lds' in s.mods.split() or 'load_lds' in op)
        s.srcc = []
        if s.kind == 'mfma':
            s.w = R(0); s.a = R(1) + R(2); s.srcc = R(3); s.r = s.a + s.srcc
        elif s.kind == 'valu':
            if op.startswith('v_cmp'):
                s.w = R(0); s.r = R(1) + R(2)
            elif op.startswith('v_permlane') and 'swap' in op:
                s.w = R(0) + R(1); s.r = R(0) + R(1)
            elif op.startswith(('v_add_co', 'v_sub_co', 'v_addc_co')):
                s.w = R(0) + R(1); s.r = sum((R(i) for i in range(2, len(ops))), [])
            else:
                s.w = R(0); s.r = sum((R(i) for i in range(1, len(ops))), [])
                if op.startswith(('v_fmac', 'v_dot2c')) or '_dpp' in op or op.startswith('v_writelane'): s.r += R(0)
                if op.startswith('v_cndmask') and len(ops) == 3: s.r += [('s', 'vcc')]
        elif s.kind == 'ds':
            if op.startswith(('ds_read', 'ds_bpermute', 'ds_permute', 'ds_swizzle')):
                s.w = R(0); s.r = sum((R(i) for i in range(1, len(ops))), [])
            else:
                s.r = sum((R(i) for i in range(len(ops))), [])
        elif s.kind == 'vmem':
            if op in ('buffer_wbl2', 'buffer_inv'): pass
            elif s.lds_dma:
                s.r = sum((R(i) for i in range(len(ops))), []) + [('s', 'm0')]
            elif 'load' in op or ('atomic' in op and 'sc0' in s.mods):
                s.w = R(0); s.r = sum((R(i) for i in range(1, len(ops))), [])
                if 'atomic' in op: s.r += R(0)
            else:
                s.r = sum((R(i) for i in range(len(ops))), [])
                s.data = R(0) if op.startswith('buffer') else R(1)
        elif s.kind == 'smem':
            s.w = R(0); s.r = sum((R(i) for i in range(1, len(ops))), [])
        else:
            if op.startswith(('s_cmp', 's_cbranch', 's_branch', 's_waitcnt', 's_barrier', 's_nop', 's_endpgm', 's_setprio', 's_sleep', 's_bitcmp', 's_setpc')):
                s.r = sum((R(i) for i in range(len(ops))), [])
                if 'vcc' in op: s.r += [('s', 'vcc')]
            else:
                s.w = R(0); s.r = sum((R(i) for i in range(1, len(ops))), [])
                if 'saveexec' in op: s.w += [('s', 'exec')]; s.r += [('s', 'exec')]
        s.states = 1
        if op == 's_nop': s.states = int(ops[0], 0) + 1
        s.passes = 0
        if s.kind == 'mfma': s.passes = 8 if '32x32x16' in op else 4

def check(lines, name=''):
    ins = []
    for l in lines:
        if 'nocount' in l and 'atomic' in l: continue
        t = l.split(';')[0].strip()
        if not t or t.endswith(':') or t.startswith('.'): continue
        ins.append(I(t))
    errs = []
    def err(i, msg): errs.append(f"[{name}] #{i} `{ins[i].text}`: {msg}")
    lastw = {}
    lastc = {}
    laststore = {}
    pos = 0
    lg = []; vm = []
    pend = {}
    for i, x in enumerate(ins):
        def dist(j_pos): return pos - j_pos - 1
        for r in set(x.r + x.w):
            if r in pend:
                err(i, f"touches {r} with outstanding load `{ins[pend[r][1]].text}`")
        for r in x.r:
            if r not in lastw: continue
            p, j = lastw[r]; y = ins[j]; d = dist(p)
            need = 0
            if y.kind == 'mfma':
                n = {4: 8, 8: 12}[y.passes]
                if x.kind == 'mfma':
                    if r in x.a: need = n
                    elif x.srcc == y.w and x.passes == y.passes: need = 0
                    else: need = n - 2
                else: need = n
            elif y.kind == 'valu':
                if r[0] in 'va':
                    if x.kind == 'mfma': need = 2
                    elif x.op.startswith('v_permlane') or '_dpp' in x.op: need = 2
                    elif x.op.startswith(('v_readlane', 'v_readfirstlane')): need = 1
                    if y.op.split('_e')[0] in TRANS and x.kind == 'valu' and x.op.split('_e')[0] not in TRANS: need = max(need, 1)
                    if y.op.split('_e')[0] in TRANS and x.kind != 'valu': need = max(need, 1)
                else:
                    if x.kind == 'valu': need = 2
                    elif x.kind == 'vmem': need = 5
                    elif x.kind == 'salu': need = 1
            elif y.kind == 'salu':
                if r == ('s', 'm0') and x.lds_dma: need = 1
            if d < need: err(i, f"RAW on {r} from `{y.text}` dist {d} < {need}")
        for r in x.w:
            if r in lastw:
                p, j = lastw[r]; y = ins[j]; d = dist(p)
                if y.kind == 'mfma' and x.kind != 'mfma':
                    n = {4: 8, 8: 12}[y.passes]
                    if d < n: err(i, f"WAW on {r} from mfma `{y.text}` dist {d} < {n}")
                if y.kind == 'mfma' and x.kind == 'mfma' and not (x.srcc == y.w):
                    n = {4: 6, 8: 10}[y.passes]
                    if d < n: err(i, f"WAW mfma/mfma on {r} `{y.text}` dist {d} < {n}")
            if r in lastc and x.kind in ('valu',):
                p, j = lastc[r]; d = dist(p); n = {4: 3, 8: 7}[ins[j].passes]
                if d < n: err(i, f"WAR srcC on {r} `{ins[j].text}` dist {d} < {n}")
            if r in laststore:
                p, j = laststore[r]
                if dist(p) < 2: err(i, f"WAR store data {r}")
        if x.kind == 'mfma' and ('s', 'exec') in lastw:
            p, j = lastw[('s', 'exec')]
            if ins[j].kind == 'valu' and dist(p) < 4: err(i, "exec->mfma")
        if x.op == 's_waitcnt':
            t = x.text
            m = re.search(r'lgkmcnt\((\d+)\)', t)
            if m:
                n = int(m.group(1))
                if any(ins[j].kind == 'smem' for j in lg) and n != 0: err(i, "counted lgkmcnt with smem outstanding")
                while len(lg) > n:
                    j = lg.pop(0)
                    for r in ins[j].w:
                        if pend.get(r) == ('lg', j): del pend[r]
            m = re.search(r'vmcnt\((\d+)\)', t)
            if m:
                n = int(m.group(1))
                while len(vm) > n:
                    j = vm.pop(0)
                    for r in ins[j].w:
                        if pend.get(r) == ('vm', j): del pend[r]
        if x.kind in ('ds', 'smem'):
            lg.append(i)
            if len(lg) > 15 and x.kind == 'ds': pass
            for r in x.w: pend[r] = ('lg', i)
        elif x.kind == 'vmem' and x.op not in ('buffer_wbl2', 'buffer_inv'):
            vm.append(i)
            if len(vm) > 63: err(i, "more than 63 vmem outstanding")
            for r in x.w: pend[r] = ('vm', i)
            if hasattr(x, 'data') and ('x4' in x.op or 'x3' in x.op):
                for r in x.data: laststore[r] = (pos + x.states - 1, i)
        for r in x.w:
            lastw[r] = (pos + x.states - 1, i)
        for r in x.srcc: lastc[r] = (pos + x.states - 1, i)
        pos += x.states
    return errs
```
